```python
import torch

def _softmax(x, axis=-1):
    return torch.softmax(x, dim=axis)
def _gelu(x):
    return torch.nn.functional.gelu(x, approximate="tanh")
def _silu(x):
    return torch.nn.functional.silu(x)
def _sigmoid(x):
    return torch.sigmoid(x)
def _layernorm(x, axis=-1, eps=1e-5):
    m = x.mean(dim=axis, keepdim=True)
    v = x.var(dim=axis, keepdim=True, unbiased=False)
    return (x - m) / torch.sqrt(v + eps)
def _scatter_add(tgt, idx, src, axis=0):
    return tgt.clone().index_add_(axis, idx, src)
def _segment_sum(src, seg, n):
    out = torch.zeros((n,) + src.shape[1:], dtype=src.dtype)
    return out.index_add_(0, seg, src)
def _pad(x, pw):
    flat = tuple(v for pair in reversed(pw) for v in pair)
    return torch.nn.functional.pad(x, flat)

kernel_name = 'standalone__qk_norm__prompt'

def setup_inputs():

    _w = (lambda a: (lambda t: t.to(torch.bfloat16) if t.is_floating_point() else t)(torch.as_tensor(a)))
    B, H, S, D = 2, 32, 2048, 576
    Dh = D // H
    return {
        "q": _w((lambda *s: torch.randn(*s, dtype=torch.bfloat16) * 0.05)(B, H, S, Dh)),
        "k": _w((lambda *s: torch.randn(*s, dtype=torch.bfloat16) * 0.05)(B, H, S, Dh)),
        "v": _w((lambda *s: torch.randn(*s, dtype=torch.bfloat16) * 0.4)(B, H, S, Dh)),
        "t": _w(torch.abs((lambda *s: torch.randn(*s, dtype=torch.bfloat16) * 0.4)(H)) + 1.0),
    }

def reference(q, k, v, t):
    eps = 1e-6
    qn = q / (torch.sqrt((q * q).sum(axis=-1, keepdims=True)) + eps)
    kn = k / (torch.sqrt((k * k).sum(axis=-1, keepdims=True)) + eps)
    logits = torch.einsum('bhqd,bhkd->bhqk', qn, kn) * t[None, :, None, None]
    attn = _softmax(logits, axis=-1)
    return torch.einsum('bhqk,bhkd->bhqd', attn, v)
```

```python
import sys
OUT = sys.argv[1] if len(sys.argv) > 1 else "standalone__qk_norm__prompt.s"
OPT = dict(a.split("=") for a in sys.argv[2:])
FORCE_SLOW = int(OPT.get("slow", 0))
T_AT = int(OPT.get("t_at", 1))
CHK_AT = int(OPT.get("chk_at", 3))
TAIL = int(OPT.get("tail", 12))

L = []
def e(s): L.append("    " + s)
def lab(s): L.append(s + ":")
def cm(s): L.append("    ; " + s)
def vr(a, n): return f"v[{a}:{a+n-1}]"

NB = 4718592
HEADB = 73728
KM, KR, VT = 0, 65536, 73728
FLAG = 151552 + 2048
LDS_BYTES = 153856
vLANE, vKM, vKR, vVT = 1, 2, 3, 4
vROW, vVA, vWK, vWKR, vWV = 5, 6, 7, 8, 9
vSS, vSS2, vR, vZ, vZQ = 10, 11, 12, 14, 15
TMP = 16
S, O0, O1, P0, P1 = 32, 64, 80, 96, 104
QM0, QM1, QR = 112, 116, 120
KMf, KRf, V0, V1 = 122, 126, 128, 132
RAW = 136
D = 216
IDN, SEL = 248, 252
M0r, M1r = 254, 255
def rawK(c): return RAW + 20*c
def rawVa(c): return RAW + 20*c + 10
def rawVb(c): return RAW + 20*c + 14
def rawVr(c): return RAW + 20*c + 18
QRAW = D
sQ, sK, sV, sO = 8, 12, 16, 20
sHEAD, sW, sIT, sC, sE, sT = 24, 25, 26, 27, 28, 29
sMASK = 30
sQOFF, sKOFF = 32, 33
sQR1 = 34
sTMP = 36

hdr = open("standalone__qk_norm__prompt.s.ref").read().split("; @launch")[0]
L.append(hdr.rstrip("\n"))
L.append(f"; @launch grid=(256,1,1) block=(512,1,1) lds={LDS_BYTES}")
L.append('.amdgcn_target "amdgcn-amd-amdhsa--gfx950"')
L.append(".text")
L.append(".globl standalone__qk_norm__prompt_kernel")
L.append(".p2align 8")
L.append(".type standalone__qk_norm__prompt_kernel,@function")
lab("standalone__qk_norm__prompt_kernel")
e("s_cmp_ge_u32 s2, 256")
e("s_cbranch_scc1 L_end")
e("s_load_dwordx4 s[40:43], s[0:1], 0")
e("s_load_dwordx4 s[44:47], s[0:1], 16")
e("s_load_dwordx2 s[48:49], s[0:1], 32")
cm("head = (b>>5)*8 + (b&7), qblock = (b>>3)&3")
e("s_lshr_b32 s3, s2, 5")
e("s_lshl_b32 s3, s3, 3")
e("s_and_b32 s4, s2, 7")
e(f"s_or_b32 s{sHEAD}, s3, s4")
e("s_bfe_u32 s5, s2, 0x20003")
e(f"v_and_b32 v{vLANE}, 63, v0")
e("v_lshrrev_b32 v16, 6, v0")
e(f"v_mul_u32_u24 v{vROW}, 36, v0")
e(f"v_readfirstlane_b32 s{sW}, v16")
e(f"s_mul_i32 s{sKOFF}, s{sHEAD}, {HEADB}")
e(f"s_mul_i32 s5, s5, {512*36}")
e(f"s_add_u32 s{sQOFF}, s{sKOFF}, s5")
cm("V A-operand offset: (w*64 + (l&31))*36 + (l>>5)*16")
e(f"v_and_b32 v17, 31, v0")
e(f"v_lshrrev_b32 v18, 5, v{vLANE}")
e("v_and_b32 v19, 0x1c0, v0")
e("v_add_u32 v19, v19, v17")
e(f"v_mul_u32_u24 v{vVA}, 36, v19")
e(f"v_lshl_add_u32 v{vVA}, v18, 4, v{vVA}")
e(f"s_and_b32 s6, s{sHEAD}, 31")
e("s_lshl_b32 s6, s6, 1")
e("s_and_b32 s7, s6, 0x3c")
e("s_waitcnt lgkmcnt(0)")
e(f"s_load_dword s{sT}, s[46:47], s7")
for srd, p in ((sQ, 40), (sK, 42), (sV, 44), (sO, 48)):
    e(f"s_mov_b32 s{srd}, s{p}")
    e(f"s_and_b32 s{srd+1}, s{p+1}, 0xffff")
    e(f"s_mov_b32 s{srd+2}, {NB}")
    e(f"s_mov_b32 s{srd+3}, 0x00020000")

def load_rows(dst, srd, soff, voff=vROW):
    e(f"buffer_load_dwordx4 {vr(dst,4)}, v{voff}, s[{srd}:{srd+3}], s{soff} offen")
    e(f"buffer_load_dwordx4 {vr(dst+4,4)}, v{voff}, s[{srd}:{srd+3}], s{soff} offen offset:16")
    e(f"buffer_load_dword v{dst+8}, v{voff}, s[{srd}:{srd+3}], s{soff} offen offset:32")
def load_V(c, soff, voffA=vVA, voffR=vROW):
    e(f"buffer_load_dwordx4 {vr(rawVa(c),4)}, v{voffA}, s[{sV}:{sV+3}], s{soff} offen")
    e(f"buffer_load_dwordx4 {vr(rawVb(c),4)}, v{voffA}, s[{sV}:{sV+3}], s{soff} offen offset:{32*36}")
    e(f"buffer_load_dword v{rawVr(c)}, v{voffR}, s[{sV}:{sV+3}], s{soff} offen offset:32")

cm("issue all global loads: Q, then chunk 0..3 of K and V")
load_rows(QRAW, sQ, sQOFF)
for c in range(4):
    if c == 0:
        so = sKOFF
    else:
        so = sTMP + c
        e(f"s_add_u32 s{so}, s{sKOFF}, {c*512*36}")
    load_rows(rawK(c), sK, so)
    load_V(c, so)

cm("constants: identity / selector B operands, LDS addresses")
e(f"v_lshlrev_b32 v19, 3, v18")
e(f"v_sub_u32 v19, v17, v19")
e("v_mov_b32 v20, 0x3f80")
e("v_mov_b32 v21, 0x3f800000")
for k in range(4):
    e(f"v_cmp_eq_u32 vcc, {2*k}, v19")
    e("s_nop 1")
    e(f"v_cndmask_b32 v{IDN+k}, 0, v20, vcc")
    e(f"v_cmp_eq_u32 vcc, {2*k+1}, v19")
    e("s_nop 1")
    e(f"v_cndmask_b32 v{IDN+k}, v{IDN+k}, v21, vcc")
e("v_cmp_eq_u32 vcc, 16, v17")
e("s_nop 1")
e(f"v_cndmask_b32 v{SEL}, 0, v20, vcc")
e("v_cmp_eq_u32 vcc, 17, v17")
e("s_nop 1")
e(f"v_cndmask_b32 v{SEL}, v{SEL}, v21, vcc")
e("v_cmp_eq_u32 vcc, 18, v17")
e("s_nop 1")
e(f"v_cndmask_b32 v{SEL+1}, 0, v20, vcc")
e(f"v_cmp_gt_u32 s[{sMASK}:{sMASK+1}], 19, v17")
e(f"v_lshlrev_b32 v{vKM}, 4, v{vLANE}")
e(f"v_lshlrev_b32 v{vKR}, 2, v{vLANE}")
e(f"v_add_u32 v{vKR}, {KR}, v{vKR}")
e("v_mov_b32 v22, 4")
e("v_cmp_gt_u32 vcc, 19, v17")
e("s_nop 1")
e("v_cndmask_b32 v22, v22, v17, vcc")
e("v_subrev_u32 v23, 20, v17")
e("v_cmp_gt_u32 vcc, 8, v23")
e("s_nop 1")
e("v_cndmask_b32 v22, v22, 0, vcc")
e(f"v_mul_u32_u24 v23, 304, v18")
e(f"v_lshl_add_u32 v{vVT}, v22, 4, v23")
e(f"v_add_u32 v{vVT}, {VT}, v{vVT}")
e(f"v_lshlrev_b32 v{vWK}, 10, v18")
e(f"v_lshl_add_u32 v{vWK}, v17, 4, v{vWK}")
e(f"v_lshl_add_u32 v{vWK}, v16, 11, v{vWK}")
e(f"v_lshl_add_u32 v{vWKR}, v16, 8, v{vKR}")
e(f"v_lshl_add_u32 v{vWV}, v17, 4, v23")
e(f"v_mul_u32_u24 v24, 2432, v16")
e(f"v_add3_u32 v{vWV}, v{vWV}, v24, v{vVT}")
e(f"v_sub_u32 v{vWV}, v{vWV}, v{vVT}")
e(f"v_add_u32 v{vWV}, {VT}, v{vWV}")
e(f"v_mov_b32 v{KRf+1}, 0x3f803f80")
for i in range(32):
    e(f"v_mov_b32 v{O0+i}, 0")
cm("zero the arrival counter")
e(f"v_mov_b32 v25, {FLAG}")
e(f"ds_write_b32 v25, v{O0}")

cm("temperature: binade selection")
e("s_waitcnt lgkmcnt(0)")
e("s_bitcmp1_b32 s6, 1")
e(f"s_cselect_b32 s3, 0, 16")
e(f"s_lshl_b32 s{sT}, s{sT}, s3")
e(f"s_and_b32 s{sT}, s{sT}, 0xffff0000")
e(f"s_and_b32 s3, s{sT}, 0x7fffffff")
e("v_mov_b32 v26, 0x3fba9a35")
e("v_mul_f32 v26, s3, v26")
e("v_mov_b32 v27, 0x3fb8aa3b")
e(f"v_mul_f32 v27, s{sT}, v27")
e("v_readfirstlane_b32 s3, v26")
e(f"v_readfirstlane_b32 s{sC}, v27")
e("s_lshr_b32 s3, s3, 23")
e(f"s_sub_i32 s{sE}, s3, 126")
e(f"s_max_i32 s{sE}, s{sE}, -8")
if FORCE_SLOW:
    e("s_branch L_slow")
e(f"s_cmp_gt_i32 s{sE}, 2")
e("s_cbranch_scc1 L_slow")
e(f"s_sub_i32 s3, 136, s{sE}")
e("s_lshl_b32 s3, s3, 23")
e(f"v_mul_f32 v27, s3, v27")
e(f"s_add_i32 s4, s{sE}, 16")
e("s_lshl_b32 s4, s4, 10")
e("s_add_u32 s4, s4, 512")
e("v_cvt_f32_u32 v26, s4")
e(f"v_readfirstlane_b32 s{sC}, v27")
e("v_and_b32 v26, 0xffff0000, v26")
e(f"v_or_b32 v{QR+1}, 0x4b40, v26")

def norm_rows(R, scale_s=None, zdst=None):
    e(f"v_mov_b32 v{vSS}, 0")
    e(f"v_mov_b32 v{vSS2}, 0")
    for i in range(9):
        e(f"v_dot2c_f32_bf16 v{vSS if i%2==0 else vSS2}, v{R+i}, v{R+i}")
def norm_rows2(R, scale_s=None, zdst=None):
    for i in range(8):
        e(f"v_lshlrev_b32 v{TMP+2*i}, 16, v{R+i}")
        e(f"v_and_b32 v{TMP+2*i+1}, 0xffff0000, v{R+i}")
    e(f"v_add_f32 v{vSS}, v{vSS}, v{vSS2}")
    e(f"v_sqrt_f32 v{vR}, v{vSS}")
    if zdst is not None:
        e(f"v_sub_f32 v{zdst}, v{vSS}, v{vSS}")
    else:
        e("s_nop 0")
    e(f"v_add_f32 v{vR}, 0x358637bd, v{vR}")
    e(f"v_rcp_f32 v{vR}, v{vR}")
    e(f"v_lshlrev_b32 v{vSS}, 16, v{R+8}")
    e(f"v_and_b32 v{vSS2}, 0xffff0000, v{R+8}")
    if scale_s is not None:
        e(f"v_mul_f32 v{vR}, s{scale_s}, v{vR}")
    for i in range(8):
        e(f"v_pk_mul_f32 {vr(TMP+2*i,2)}, {vr(TMP+2*i,2)}, {vr(vR,2)} op_sel_hi:[1,0]")
    e(f"v_pk_mul_f32 {vr(vSS,2)}, {vr(vSS,2)}, {vr(vR,2)} op_sel_hi:[1,0]")
    for i in range(8):
        e(f"v_cvt_pk_bf16_f32 v{R+i}, v{TMP+2*i}, v{TMP+2*i+1}")
    e(f"v_cvt_pk_bf16_f32 v{R+8}, v{vSS}, v{vSS2}")

def prep_Q():
    norm_rows(QRAW)
    norm_rows2(QRAW, sC, vZQ)
    for i in range(4):
        e(f"v_mov_b32 v{QM0+i}, v{QRAW+i}")
        e(f"v_mov_b32 v{QM1+i}, v{QRAW+4+i}")
    e(f"v_mov_b32 v{QR}, v{QRAW+8}")
    e("s_nop 1")
    for i in range(4):
        e(f"v_permlane32_swap_b32 v{QM0+i}, v{QM1+i}")

def transform(c):
    cm(f"---- transform chunk {c}")
    Rk = rawK(c)
    e(f"v_mfma_f32_32x32x16_bf16 {vr(D,16)}, {vr(rawVa(c),4)}, {vr(IDN,4)}, 0")
    e(f"v_mfma_f32_32x32x16_bf16 {vr(D+16,16)}, {vr(rawVb(c),4)}, {vr(IDN,4)}, 0")
    norm_rows(Rk)
    norm_rows2(Rk, None, vZ)
    e(f"v_add_f32 v{vZ}, 1.0, v{vZ}")
    e(f"v_lshrrev_b32 v{rawVr(c)+1}, 16, v{vZ}")
    e(f"ds_write_b128 v{vWK}, {vr(Rk,4)} offset:{c*16*1024}")
    e(f"ds_write_b128 v{vWK}, {vr(Rk+4,4)} offset:{c*16*1024+512}")
    e(f"v_mfma_f32_32x32x4_2b_bf16 {vr(D,32)}, {vr(rawVr(c),2)}, {vr(SEL,2)}, {vr(D,32)}")
    e(f"ds_write_b32 v{vWKR}, v{Rk+8} offset:{c*8*256}")
def transform_fin(c):
    for i in range(16):
        e(f"v_cvt_pk_f16_f32 v{TMP+i}, v{D+2*i}, v{D+2*i+1}")
    e(f"s_mov_b64 exec, s[{sMASK}:{sMASK+1}]")
    for tt in range(2):
        for m in range(2):
            e(f"ds_write_b128 v{vWV}, {vr(TMP+8*tt+4*m,4)} offset:{(c*16+tt)*1216+m*608}")
    e("s_mov_b64 exec, -1")

cm("---- Q")
e("s_waitcnt vmcnt(24)")
prep_Q()
e("s_waitcnt vmcnt(18)")
transform(0)
e("s_nop 15")
e("s_nop 3")
transform_fin(0)
e("s_waitcnt lgkmcnt(0)")
e("s_barrier")

cm("---- pipeline prologue")
e(f"ds_read_b128 {vr(KMf,4)}, v{vKM}")
e(f"ds_read_b32 v{KRf}, v{vKR}")
e(f"ds_read_b128 {vr(V0,4)}, v{vVT}")
e(f"ds_read_b128 {vr(V1,4)}, v{vVT} offset:608")
e(f"s_mov_b32 s{sIT}, 0")
e("s_waitcnt lgkmcnt(0)")
e(f"v_mfma_f32_32x32x16_bf16 {vr(S,16)}, {vr(KMf,4)}, {vr(QM0,4)}, 0")
e(f"v_mfma_f32_32x32x16_bf16 {vr(S+16,16)}, {vr(KMf,4)}, {vr(QM1,4)}, 0")
e(f"ds_read_b128 {vr(KMf,4)}, v{vKM} offset:1024")
cm("V magnitude check: some |v| >= 2^-7 among the first 16 keys")
e(f"v_or3_b32 v16, v{V0}, v{V0+1}, v{V0+2}")
e(f"v_or_b32 v16, v16, v{V0+3}")
e("v_and_b32 v16, 0x60006000, v16")
e("v_cmp_ne_u32 vcc, 0, v16")
e("s_mov_b32 s4, 0xfffbffff")
e("s_mov_b32 s5, s4")
e("s_nop 4")
e(f"v_mfma_f32_32x32x4_2b_bf16 {vr(S,32)}, {vr(KRf,2)}, {vr(QR,2)}, {vr(S,32)} cbsz:1 abid:0")
e("s_and_b64 s[4:5], s[4:5], vcc")
e("s_cbranch_scc0 L_slow")
e("s_nop 15")
e("s_nop 3")

def Xphase():
    x = [f"v_exp_f16 v{P0+j}, v{S+2*j}" for j in range(16)]
    x += [f"v_exp_f16_sdwa v{P0+j}, v{S+2*j+1} dst_sel:WORD_1 dst_unused:UNUSED_PRESERVE src0_sel:WORD_0" for j in range(16)]
    e("s_setprio 0")
    for i, s in enumerate(x):
        if i == 32 - TAIL: e("s_setprio 1")
        e(s)
def PV(o, v, p):
    e(f"v_mfma_f32_32x32x16_f16 {vr(o,16)}, {vr(v,4)}, {vr(p,4)}, {vr(o,16)}")
def Yphase(j):
    e("s_waitcnt lgkmcnt(0)")
    PV(O0, V0, P0)
    e(f"v_mfma_f32_32x32x16_bf16 {vr(S,16)}, {vr(KMf,4)}, {vr(QM0,4)}, 0")
    e(f"v_mfma_f32_32x32x16_bf16 {vr(S+16,16)}, {vr(KMf,4)}, {vr(QM1,4)}, 0")
    e(f"ds_read_b128 {vr(KMf,4)}, v{vKM} offset:{(j+2)*1024}")
    PV(O1, V0, P1)
    e(f"ds_read_b128 {vr(V0,4)}, v{vVT} offset:{(j+1)*1216}")
    e(f"v_mfma_f32_32x32x4_2b_bf16 {vr(S,32)}, {vr(KRf,2)}, {vr(QR,2)}, {vr(S,32)} cbsz:1 abid:{(j+1)&1}")
    if (j+1) & 1:
        e(f"ds_read_b32 v{KRf}, v{vKR} offset:{((j+2)//2)*256}")
    PV(O0, V1, P0+4)
    PV(O1, V1, P1+4)
    e(f"ds_read_b128 {vr(V1,4)}, v{vVT} offset:{(j+1)*1216+608}")

L.append(".p2align 6")
lab("L_loop")
for j in range(4):
    Xphase()
    if j == 3:
        e(f"s_cmp_eq_u32 s{sIT}, 15")
        e("s_cbranch_scc1 L_last")
    Yphase(j)
e(f"v_add_u32 v{vKM}, 4096, v{vKM}")
e(f"v_add_u32 v{vKR}, 512, v{vKR}")
e(f"v_add_u32 v{vVT}, {4*1216}, v{vVT}")
e(f"s_add_u32 s{sIT}, s{sIT}, 1")
e(f"s_cmp_eq_u32 s{sIT}, {T_AT}")
e("s_cbranch_scc1 L_T")
e(f"s_cmp_lg_u32 s{sIT}, {CHK_AT}")
e("s_cbranch_scc1 L_loop")
cm("wait until all 8 waves have published chunks 1..3")
e(f"v_mov_b32 v16, {FLAG}")
lab("L_chk")
e("s_waitcnt lgkmcnt(0)")
e("ds_read_b32 v17, v16")
e("s_waitcnt lgkmcnt(0)")
e("v_readfirstlane_b32 s3, v17")
e("s_cmp_ge_u32 s3, 8")
e("s_cbranch_scc1 L_loop")
e("s_sleep 1")
e("s_branch L_chk")

lab("L_T")
e("s_setprio 0")
e("s_waitcnt vmcnt(0)")
for c in range(1, 4):
    transform(c)
    e("s_nop 15")
    e("s_nop 3")
    transform_fin(c)
e("s_waitcnt lgkmcnt(0)")
e(f"v_mov_b32 v16, {FLAG}")
e("v_mov_b32 v17, 1")
e("s_mov_b64 exec, 1")
e("ds_add_u32 v16, v17")
e("s_mov_b64 exec, -1")
e("s_branch L_loop")

lab("L_last")
e("s_waitcnt lgkmcnt(0)")
PV(O0, V0, P0)
PV(O1, V0, P1)
PV(O0, V1, P0+4)
PV(O1, V1, P1+4)
e("s_setprio 0")
e(f"s_mov_b32 s{sIT}, 0")
e("s_nop 11")

lab("L_epi")
cm("---- epilogue: row per lane, normalise, store")
for i in range(11):
    e(f"v_permlane32_swap_b32 v{O0+i}, v{O1+i}")
e("s_nop 0")
e(f"v_rcp_f32 v16, v{O0+10}")
e("s_nop 0")
e(f"v_add_f32 v16, v16, v{vZQ}")
src = [O0+0,O0+1,O0+2,O0+3,O1+0,O1+1,O1+2,O1+3,O0+4,O0+5,O0+6,O0+7,O1+4,O1+5,O1+6,O1+7,O0+8,O0+9]
for r in src:
    e(f"v_mul_f32 v{r}, v16, v{r}")
e(f"s_cmp_lg_u32 s{sIT}, 0")
e("s_cbranch_scc1 L_store")
cm("fast path only: any non-finite value -> redo this wave's rows on the general path")
e("v_mov_b32 v17, 0")
for r in src:
    e(f"v_fma_f32 v17, v{r}, 0, v17")
e("v_cmp_u_f32 vcc, v17, v17")
e("s_nop 1")
e("s_cmp_lg_u64 vcc, 0")
e("s_cbranch_scc1 L_slow")
lab("L_store")
for i in range(9):
    e(f"v_cvt_pk_bf16_f32 v{20+i}, v{src[2*i]}, v{src[2*i+1]}")
e(f"buffer_store_dwordx4 v[20:23], v{vROW}, s[{sO}:{sO+3}], s{sQOFF} offen")
e(f"buffer_store_dwordx4 v[24:27], v{vROW}, s[{sO}:{sO+3}], s{sQOFF} offen offset:16")
e(f"buffer_store_dword v28, v{vROW}, s[{sO}:{sO+3}], s{sQOFF} offen offset:32")
lab("L_end")
e("s_endpgm")

lab("L_slow")
cm("==== general path: per wave, no LDS, two passes (true row max, then exp/sum), bf16 P and V")
e("s_setprio 0")
e("s_waitcnt vmcnt(0) lgkmcnt(0)")
e("v_mov_b32 v27, 0x3fb8aa3b")
e(f"v_mul_f32 v27, s{sT}, v27")
load_rows(QRAW, sQ, sQOFF)
e(f"v_readfirstlane_b32 s{sC}, v27")
e(f"v_mul_u32_u24 v{vKM}, 36, v{vLANE}")
e(f"v_and_b32 v17, 31, v{vLANE}")
e(f"v_lshrrev_b32 v18, 5, v{vLANE}")
e(f"v_mul_u32_u24 v{vKR}, 36, v17")
e(f"v_lshl_add_u32 v{vKR}, v18, 4, v{vKR}")
e("s_waitcnt vmcnt(0)")
prep_Q()
e(f"v_mov_b32 v{QR+1}, 0")
e(f"v_mov_b32 v{vZQ}, 0")
e(f"v_mov_b32 v{rawK(0)+9}, 0")
e(f"v_mov_b32 v{rawVr(0)+1}, 0x3f80")
e(f"v_mov_b32 v{M0r}, 0xff800000")
e(f"v_mov_b32 v{M1r}, 0xff800000")
for i in range(32):
    e(f"v_mov_b32 v{O0+i}, 0")
def slow_K():
    Rk = rawK(0)
    norm_rows(Rk)
    norm_rows2(Rk, None, None)
    e("s_nop 1")
    for i in range(4):
        e(f"v_permlane32_swap_b32 v{Rk+i}, v{Rk+4+i}")
    e("s_nop 1")
def slow_S(tt):
    Rk = rawK(0)
    e(f"v_mfma_f32_32x32x16_bf16 {vr(S,16)}, {vr(Rk+4*tt,4)}, {vr(QM0,4)}, 0")
    e(f"v_mfma_f32_32x32x16_bf16 {vr(S+16,16)}, {vr(Rk+4*tt,4)}, {vr(QM1,4)}, 0")
    e("s_nop 10")
    e(f"v_mfma_f32_32x32x4_2b_bf16 {vr(S,32)}, {vr(Rk+8,2)}, {vr(QR,2)}, {vr(S,32)} cbsz:1 abid:{tt}")
    e("s_nop 15")
    e("s_nop 4")
e(f"s_mov_b32 s{sTMP}, s{sKOFF}")
e(f"s_mov_b32 s{sIT}, 0")
lab("L_s1")
load_rows(rawK(0), sK, sTMP, vKM)
e("s_waitcnt vmcnt(0)")
slow_K()
for tt in range(2):
    slow_S(tt)
    for i in range(8):
        e(f"v_max3_f32 v{M0r}, v{S+2*i}, v{S+2*i+1}, v{M0r}")
        e(f"v_max3_f32 v{M1r}, v{S+16+2*i}, v{S+16+2*i+1}, v{M1r}")
e(f"s_add_u32 s{sTMP}, s{sTMP}, {64*36}")
e(f"s_add_u32 s{sIT}, s{sIT}, 1")
e(f"s_cmp_lt_u32 s{sIT}, 32")
e("s_cbranch_scc1 L_s1")
cm("combine the two half-waves' maxima")
for m in (M0r, M1r):
    e(f"v_mov_b32 v16, v{m}")
    e(f"v_mov_b32 v17, v{m}")
    e("s_nop 1")
    e("v_permlane32_swap_b32 v16, v17")
    e("s_nop 1")
    e(f"v_max_f32 v{m}, v16, v17")
e(f"s_mov_b32 s{sTMP}, s{sKOFF}")
e(f"s_mov_b32 s{sIT}, 0")
lab("L_s2")
load_rows(rawK(0), sK, sTMP, vKM)
load_V(0, sTMP, vKR, vKM)
e("s_waitcnt vmcnt(0)")
e(f"v_mfma_f32_32x32x16_bf16 {vr(D,16)}, {vr(rawVa(0),4)}, {vr(IDN,4)}, 0")
e(f"v_mfma_f32_32x32x16_bf16 {vr(D+16,16)}, {vr(rawVb(0),4)}, {vr(IDN,4)}, 0")
e("s_nop 10")
e(f"v_mfma_f32_32x32x4_2b_bf16 {vr(D,32)}, {vr(rawVr(0),2)}, {vr(SEL,2)}, {vr(D,32)}")
slow_K()
WV = rawK(1)
for i in range(16):
    e(f"v_cvt_pk_bf16_f32 v{WV+i}, v{D+2*i}, v{D+2*i+1}")
for tt in range(2):
    slow_S(tt)
    for i in range(32):
        e(f"v_sub_f32 v{S+i}, v{S+i}, v{M0r if i < 16 else M1r}")
    for i in range(32):
        e(f"v_exp_f32 v{S+i}, v{S+i}")
    e("s_nop 0")
    for i in range(16):
        e(f"v_cvt_pk_bf16_f32 v{P0+i}, v{S+2*i}, v{S+2*i+1}")
    e("s_nop 1")
    for (o, vv, p) in ((O0, 0, P0), (O1, 0, P1), (O0, 4, P0+4), (O1, 4, P1+4)):
        e(f"v_mfma_f32_32x32x16_bf16 {vr(o,16)}, {vr(WV+8*tt+vv,4)}, {vr(p,4)}, {vr(o,16)}")
e(f"s_add_u32 s{sTMP}, s{sTMP}, {64*36}")
e(f"s_add_u32 s{sIT}, s{sIT}, 1")
e(f"s_cmp_lt_u32 s{sIT}, 32")
e("s_cbranch_scc1 L_s2")
e("s_nop 15")
e("s_branch L_epi")

L.append('.section .rodata,"a"')
L.append(".p2align 6")
L.append(""".amdhsa_kernel standalone__qk_norm__prompt_kernel
  .amdhsa_next_free_vgpr 256
  .amdhsa_next_free_sgpr 64
  .amdhsa_accum_offset 256
  .amdhsa_group_segment_fixed_size 0
  .amdhsa_kernarg_size 56
  .amdhsa_user_sgpr_count 2
  .amdhsa_user_sgpr_kernarg_segment_ptr 1
  .amdhsa_system_sgpr_workgroup_id_x 1
.end_amdhsa_kernel""")
open(OUT, "w").write("\n".join(L) + "\n")
```
